```python
import torch

def _softmax(x, axis=-1):
    return torch.softmax(x, dim=axis)
def _gelu(x):
    return torch.nn.functional.gelu(x, approximate="tanh")
def _silu(x):
    return torch.nn.functional.silu(x)
def _sigmoid(x):
    return torch.sigmoid(x)
def _layernorm(x, axis=-1, eps=1e-5):
    m = x.mean(dim=axis, keepdim=True)
    v = x.var(dim=axis, keepdim=True, unbiased=False)
    return (x - m) / torch.sqrt(v + eps)
def _scatter_add(tgt, idx, src, axis=0):
    return tgt.clone().index_add_(axis, idx, src)
def _segment_sum(src, seg, n):
    out = torch.zeros((n,) + src.shape[1:], dtype=src.dtype)
    return out.index_add_(0, seg, src)
def _pad(x, pw):
    flat = tuple(v for pair in reversed(pw) for v in pair)
    return torch.nn.functional.pad(x, flat)

kernel_name = 'standalone__edge_featured_mpnn_gatedgcn__graph'

def setup_inputs():

    _w = (lambda a: (lambda t: t.to(torch.bfloat16) if t.is_floating_point() else t)(torch.as_tensor(a)))
    N, deg, D, De = 10000, 16, 128, max(4, 1)
    E = N * deg
    return {
        "x": _w((lambda *s: torch.randn(*s, dtype=torch.bfloat16) * 0.4)(N, D)),
        "e_attr": _w((lambda *s: torch.randn(*s, dtype=torch.bfloat16) * 0.8)(E, De)),
        "src": _w((lambda lo, hi, *s: torch.randint(lo, hi, s))(0, N, E).to(torch.int64)),
        "dst": _w((lambda lo, hi, *s: torch.randint(lo, hi, s))(0, N, E).to(torch.int64)),
        "w_a": _w((lambda *s: torch.randn(*s, dtype=torch.bfloat16) * 0.4)(D, D)),
        "w_b": _w((lambda *s: torch.randn(*s, dtype=torch.bfloat16) * 0.4)(D, D)),
        "w_c": _w((lambda *s: torch.randn(*s, dtype=torch.bfloat16) * 0.8)(De, D)),
        "w_u": _w((lambda *s: torch.randn(*s, dtype=torch.bfloat16) * 0.05)(D, D)),
        "w_v": _w((lambda *s: torch.randn(*s, dtype=torch.bfloat16) * 0.05)(D, D)),
    }

def reference(x, e_attr, src, dst, w_a, w_b, w_c, w_u, w_v):
    N, D = x.shape
    hv = x @ w_v
    g = x[dst] @ w_a + x[src] @ w_b + e_attr @ w_c
    eta = _sigmoid(g)
    denom = _segment_sum(eta, dst, N) + 1e-6
    eta_n = eta / denom[dst]
    agg = _segment_sum(eta_n * hv[src], dst, N)
    z = x @ w_u + agg
    relu_z = torch.where(z > 0, z, 0 * z)
    return x + relu_z
```

```python
import sys
NEMPTY=int(sys.argv[1]) if len(sys.argv)>1 else 0
out=sys.argv[2] if len(sys.argv)>2 else 'naive.s'
hdr=[l for l in open('standalone__edge_featured_mpnn_gatedgcn__graph.s.ref').read().split('\n')]
top=[]
for l in hdr:
    if l.startswith('; @launch'): break
    top.append(l)
L=top[:]
L.append('; @launch kernel=ka_kernel grid=(10000,1,1) block=(512,1,1) lds=0')
L.append('; @launch kernel=kb_kernel grid=(40000,1,1) block=(256,1,1) lds=0')
for i in range(NEMPTY): L.append('; @launch kernel=ke_kernel grid=(256,1,1) block=(256,1,1) lds=0')
L.append('; @launch kernel=kc_kernel grid=(5000,1,1) block=(256,1,1) lds=0')
L.append('.amdgcn_target "amdgcn-amd-amdhsa--gfx950"')
L.append('.text')
def kern(name, body):
    L.append(f'.globl {name}')
    L.append('.p2align 8')
    L.append(f'.type {name},@function')
    L.append(f'{name}:')
    L.extend(body.strip('\n').split('\n'))
    L.append('s_endpgm')
kern('ka_kernel', '''
    s_cmp_ge_u32 s2, 10000
    s_cbranch_scc1 ka_end
    s_load_dwordx2 s[4:5], s[0:1], 0
    s_load_dwordx4 s[8:11], s[0:1], 32
    s_load_dwordx4 s[12:15], s[0:1], 56
    s_load_dwordx2 s[16:17], s[0:1], 88
    v_lshrrev_b32 v1, 7, v0
    s_nop 1
    v_readfirstlane_b32 s3, v1
    s_waitcnt lgkmcnt(0)
    ; select W: m=0 w_a s[8:9], 1 w_b s[10:11], 2 w_u s[12:13], 3 w_v s[14:15]
    s_mov_b64 s[20:21], s[8:9]
    s_cmp_eq_u32 s3, 1
    s_cselect_b64 s[20:21], s[10:11], s[20:21]
    s_cmp_eq_u32 s3, 2
    s_cselect_b64 s[20:21], s[12:13], s[20:21]
    s_cmp_eq_u32 s3, 3
    s_cselect_b64 s[20:21], s[14:15], s[20:21]
    s_mov_b32 s22, 32768
    s_mov_b32 s23, 0x00020000
    s_mov_b32 s6, 2560000
    s_mov_b32 s7, 0x00020000
    s_mov_b32 s18, 30720000
    s_mov_b32 s19, 0x00020000
    v_and_b32 v2, 127, v0
    v_lshlrev_b32 v3, 1, v2
    s_lshl_b32 s24, s2, 8
    v_mov_b32 v4, s24
    v_mov_b32 v5, 0
    s_mov_b32 s25, 0
ka_loop:
    buffer_load_ushort v6, v4, s[4:7], 0 offen
    buffer_load_ushort v7, v3, s[20:23], 0 offen
    v_add_u32 v4, 2, v4
    v_add_u32 v3, 256, v3
    s_waitcnt vmcnt(0)
    v_lshlrev_b32 v6, 16, v6
    v_lshlrev_b32 v7, 16, v7
    v_fmac_f32 v5, v6, v7
    s_add_u32 s25, s25, 1
    s_cmp_lt_u32 s25, 128
    s_cbranch_scc1 ka_loop
    s_mul_i32 s26, s3, 5120000
    s_lshl_b32 s27, s2, 9
    s_add_u32 s26, s26, s27
    v_lshlrev_b32 v2, 2, v2
    v_add_u32 v8, s26, v2
    buffer_store_dword v5, v8, s[16:19], 0 offen
    s_cmp_lt_u32 s3, 2
    s_cbranch_scc0 ka_end
    v_mov_b32 v9, 0
    v_add_u32 v8, 20480000, v8
    buffer_store_dword v9, v8, s[16:19], 0 offen
ka_end:
''')
kern('kb_kernel', '''
    s_cmp_ge_u32 s2, 40000
    s_cbranch_scc1 kb_end
    s_load_dwordx2 s[4:5], s[0:1], 8
    s_load_dwordx4 s[8:11], s[0:1], 16
    s_load_dwordx2 s[12:13], s[0:1], 48
    s_load_dwordx2 s[16:17], s[0:1], 88
    v_lshrrev_b32 v1, 6, v0
    s_nop 1
    v_readfirstlane_b32 s3, v1
    s_lshl_b32 s24, s2, 2
    s_add_u32 s3, s3, s24        ; edge
    s_lshl_b32 s24, s3, 2
    s_lshl_b32 s25, s3, 3
    s_waitcnt lgkmcnt(0)
    s_load_dword s26, s[8:9], s24
    s_load_dword s27, s[10:11], s24
    s_load_dwordx2 s[28:29], s[4:5], s25
    s_mov_b32 s14, 1024
    s_mov_b32 s15, 0x00020000
    s_mov_b32 s18, 30720000
    s_mov_b32 s19, 0x00020000
    v_and_b32 v2, 63, v0
    v_lshlrev_b32 v3, 2, v2
    buffer_load_dword v10, v3, s[12:15], 0 offen
    buffer_load_dword v11, v3, s[12:15], 0 offen offset:256
    buffer_load_dword v12, v3, s[12:15], 0 offen offset:512
    buffer_load_dword v13, v3, s[12:15], 0 offen offset:768
    v_lshlrev_b32 v4, 3, v2      ; 2 ch * 4B
    s_waitcnt lgkmcnt(0)
    s_lshl_b32 s26, s26, 9
    s_lshl_b32 s27, s27, 9
    v_add_u32 v5, s27, v4        ; A off
    v_add_u32 v6, s26, v4
    v_add_u32 v7, 5120000, v6    ; B off
    v_add_u32 v6, 15360000, v6   ; V off
    buffer_load_dwordx2 v[14:15], v5, s[16:19], 0 offen
    buffer_load_dwordx2 v[16:17], v7, s[16:19], 0 offen
    buffer_load_dwordx2 v[18:19], v6, s[16:19], 0 offen
    s_lshl_b32 s30, s28, 16
    s_and_b32 s31, s28, 0xffff0000
    s_lshl_b32 s32, s29, 16
    s_and_b32 s33, s29, 0xffff0000
    s_waitcnt vmcnt(0)
    v_add_f32 v14, v14, v16
    v_add_f32 v15, v15, v17
    v_lshlrev_b32 v20, 16, v10
    v_and_b32 v21, 0xffff0000, v10
    v_fma_f32 v14, s30, v20, v14
    v_fma_f32 v15, s30, v21, v15
    v_lshlrev_b32 v20, 16, v11
    v_and_b32 v21, 0xffff0000, v11
    v_fma_f32 v14, s31, v20, v14
    v_fma_f32 v15, s31, v21, v15
    v_lshlrev_b32 v20, 16, v12
    v_and_b32 v21, 0xffff0000, v12
    v_fma_f32 v14, s32, v20, v14
    v_fma_f32 v15, s32, v21, v15
    v_lshlrev_b32 v20, 16, v13
    v_and_b32 v21, 0xffff0000, v13
    v_fma_f32 v14, s33, v20, v14
    v_fma_f32 v15, s33, v21, v15
    v_mul_f32 v14, 0xbfb8aa3b, v14
    v_mul_f32 v15, 0xbfb8aa3b, v15
    v_exp_f32 v14, v14
    v_exp_f32 v15, v15
    s_nop 1
    v_add_f32 v14, 1.0, v14
    v_add_f32 v15, 1.0, v15
    v_rcp_f32 v14, v14
    v_rcp_f32 v15, v15
    s_nop 1
    v_mul_f32 v18, v14, v18
    v_mul_f32 v19, v15, v19
    v_add_u32 v5, 20480000, v5
    v_add_u32 v6, 5120000, v5
    buffer_atomic_add_f32 v14, v5, s[16:19], 0 offen
    buffer_atomic_add_f32 v15, v5, s[16:19], 0 offen offset:4
    buffer_atomic_add_f32 v18, v6, s[16:19], 0 offen
    buffer_atomic_add_f32 v19, v6, s[16:19], 0 offen offset:4
    s_waitcnt vmcnt(0)
kb_end:
''')
kern('ke_kernel', '''
    s_nop 0
''')
kern('kc_kernel', '''
    s_load_dwordx2 s[4:5], s[0:1], 0
    s_load_dwordx2 s[8:9], s[0:1], 72
    s_load_dwordx2 s[16:17], s[0:1], 88
    s_mov_b32 s6, 2560000
    s_mov_b32 s7, 0x00020000
    s_mov_b32 s10, 2560000
    s_mov_b32 s11, 0x00020000
    s_mov_b32 s18, 30720000
    s_mov_b32 s19, 0x00020000
    s_cmp_ge_u32 s2, 5000
    s_cbranch_scc1 kc_end
    s_lshl_b32 s3, s2, 8
    v_add_u32 v1, s3, v0
    v_lshlrev_b32 v2, 1, v1
    v_lshlrev_b32 v3, 2, v1
    v_add_u32 v4, 10240000, v3
    v_add_u32 v5, 20480000, v3
    v_add_u32 v6, 25600000, v3
    s_waitcnt lgkmcnt(0)
    buffer_load_ushort v10, v2, s[4:7], 0 offen
    buffer_load_dword v11, v4, s[16:19], 0 offen
    buffer_load_dword v12, v5, s[16:19], 0 offen
    buffer_load_dword v13, v6, s[16:19], 0 offen
    s_waitcnt vmcnt(0)
    v_lshlrev_b32 v10, 16, v10
    v_add_f32 v12, 0x358637bd, v12
    v_rcp_f32 v12, v12
    s_nop 1
    v_fmac_f32 v11, v13, v12
    v_max_f32 v11, 0, v11
    v_add_f32 v10, v10, v11
    v_cvt_pk_bf16_f32 v10, v10, v10
    buffer_store_short v10, v2, s[8:11], 0 offen
kc_end:
''')
L.append('.section .rodata,"a"')
for name in ['ka_kernel','kb_kernel','ke_kernel','kc_kernel']:
    if name=='ke_kernel' and NEMPTY==0:
        pass
    L.append('.p2align 6')
    L.append(f'''.amdhsa_kernel {name}
  .amdhsa_next_free_vgpr 32
  .amdhsa_next_free_sgpr 102
  .amdhsa_accum_offset 32
  .amdhsa_group_segment_fixed_size 0
  .amdhsa_kernarg_size 96
  .amdhsa_user_sgpr_count 2
  .amdhsa_user_sgpr_kernarg_segment_ptr 1
  .amdhsa_system_sgpr_workgroup_id_x 1
.end_amdhsa_kernel''')
open(out,'w').write('\n'.join(L)+'\n')
```

```python
import sys
src,out,A,B,M=sys.argv[1:6]
M=int(M)
def red(x,sd,tag):
    if x=='now': return f's_mov_b32 s{sd}, s6'
    p=x.split(','); op=p[0]; k,f=int(p[1]),int(p[2])
    if len(p)>3: first,step,n=int(p[3]),8,31
    else: first,step,n=0,1,250
    return f''' v_and_b32 v1, 15, v0
 v_lshlrev_b32 v1, 6, v1
 v_add_u32 v1, {0x800000+(k*256+first)*1024+f*4}, v1
 v_lshrrev_b32 v4, 4, v0
 v_mul_u32_u24 v4, {step*1024}, v4
 v_add_u32 v1, v1, v4
 v_mov_b32 v2, {0 if op=='max' else -1}
 s_mov_b32 s12, 0
k3_r{tag}:
 global_load_dword v3, v1, s[4:5]
 v_add_u32 v1, {step*1024}, v1
 s_waitcnt vmcnt(0)
 v_{op}_u32 v2, v2, v3
 s_add_u32 s12, s12, 1
 s_cmp_lt_u32 s12, {n-3}
 s_cbranch_scc1 k3_r{tag}
 s_mov_b32 s12, 0
 s_mov_b32 s{sd}, {0 if op=='max' else -1}
k3_l{tag}:
 v_readlane_b32 s13, v2, s12
 s_{op}_u32 s{sd}, s{sd}, s13
 s_add_u32 s12, s12, 1
 s_cmp_lt_u32 s12, 64
 s_cbranch_scc1 k3_l{tag}'''
s=open(src).read()
i=s.index('.amdgcn_target')
s=s[:i]+'; @launch kernel=k3_kernel grid=(1,1,1) block=(64,1,1) lds=0\n'+s[i:]
k3=f'''.globl k3_kernel
.p2align 8
.type k3_kernel,@function
k3_kernel:
 s_cmp_ge_u32 s2, 1
 s_cbranch_scc1 k3_end
 s_memrealtime s[6:7]
 s_load_dwordx2 s[4:5], s[0:1], 88
 s_waitcnt lgkmcnt(0)
{red(A,14,'a')}
{red(B,15,'b')}
 s_sub_u32 s8, s15, s14
 s_mul_i32 s8, s8, {M}
 s_add_u32 s8, s8, 50000
 s_min_u32 s8, s8, 200000
k3_loop:
 s_memrealtime s[10:11]
 s_waitcnt lgkmcnt(0)
 s_sub_u32 s9, s10, s6
 s_cmp_lt_u32 s9, s8
 s_cbranch_scc1 k3_loop
k3_end:
 s_endpgm
'''
i=s.index('.section .rodata')
s=s[:i]+k3+s[i:]+'''.p2align 6
.amdhsa_kernel k3_kernel
  .amdhsa_next_free_vgpr 8
  .amdhsa_next_free_sgpr 102
  .amdhsa_accum_offset 8
  .amdhsa_group_segment_fixed_size 0
  .amdhsa_kernarg_size 96
  .amdhsa_user_sgpr_count 2
  .amdhsa_user_sgpr_kernarg_segment_ptr 1
  .amdhsa_system_sgpr_workgroup_id_x 1
.end_amdhsa_kernel
'''
open(out,'w').write(s)
```

```python
import sys
src,out,A,B,M=sys.argv[1:6]
M=int(M)
def red(x,sd,tag):
    if x=='now': return f's_mov_b32 s{sd}, s6'
    if x.startswith('ke'):
        return f''' v_mov_b32 v1, {0x8f0000}
 global_load_dword v3, v1, s[4:5]
 s_waitcnt vmcnt(0)
 v_readfirstlane_b32 s{sd}, v3'''
    p=x.split(','); op=p[0]; k,f=int(p[1]),int(p[2])
    if len(p)>3: first,step,n=int(p[3]),8,31
    else: first,step,n=0,1,250
    return f''' v_and_b32 v1, 15, v0
 v_lshlrev_b32 v1, 6, v1
 v_add_u32 v1, {0x800000+(k*256+first)*1024+f*4}, v1
 v_lshrrev_b32 v4, 4, v0
 v_mul_u32_u24 v4, {step*1024}, v4
 v_add_u32 v1, v1, v4
 v_mov_b32 v2, {0 if op=='max' else -1}
 s_mov_b32 s12, 0
k3_r{tag}:
 global_load_dword v3, v1, s[4:5]
 v_add_u32 v1, {step*1024}, v1
 s_waitcnt vmcnt(0)
 v_{op}_u32 v2, v2, v3
 s_add_u32 s12, s12, 1
 s_cmp_lt_u32 s12, {n-3}
 s_cbranch_scc1 k3_r{tag}
 s_mov_b32 s12, 0
 s_mov_b32 s{sd}, {0 if op=='max' else -1}
k3_l{tag}:
 v_readlane_b32 s13, v2, s12
 s_{op}_u32 s{sd}, s{sd}, s13
 s_add_u32 s12, s12, 1
 s_cmp_lt_u32 s12, 64
 s_cbranch_scc1 k3_l{tag}'''
s=open(src).read()
import re
if len(sys.argv)>6:
    ls=re.findall(r'; @launch kernel=.*\n',s)
    m={'1':ls[0],'2':ls[1],'e':'; @launch kernel=ke_kernel grid=(1,1,1) block=(64,1,1) lds=0\n',
       'E':'; @launch kernel=ke_kernel grid=(250,1,1) block=(1024,1,1) lds=137216\n',
       'F':'; @launch kernel=ke_kernel grid=(250,1,1) block=(1024,1,1) lds=0\n',
       'G':'; @launch kernel=ke_kernel grid=(1,1,1) block=(64,1,1) lds=137216\n'}
    s=s.replace(ls[0]+ls[1],''.join(m[c] for c in sys.argv[6]))
    if re.search('[eEFG]',sys.argv[6]):
        i=s.index('.section .rodata')
        s=s[:i]+'''.globl ke_kernel
.p2align 8
.type ke_kernel,@function
ke_kernel:
 s_memrealtime s[6:7]
 s_cmp_ge_u32 s2, 1
 s_cbranch_scc1 ke_end
 s_load_dwordx2 s[4:5], s[0:1], 88
 v_mov_b32 v1, 0x8f0000
 s_waitcnt lgkmcnt(0)
 v_mov_b32 v2, s6
 global_store_dword v1, v2, s[4:5]
ke_end:
 s_endpgm
'''+s[i:]+'''.p2align 6
.amdhsa_kernel ke_kernel
  .amdhsa_next_free_vgpr 8
  .amdhsa_next_free_sgpr 102
  .amdhsa_accum_offset 8
  .amdhsa_group_segment_fixed_size 0
  .amdhsa_kernarg_size 96
  .amdhsa_user_sgpr_count 2
  .amdhsa_user_sgpr_kernarg_segment_ptr 1
  .amdhsa_system_sgpr_workgroup_id_x 1
.end_amdhsa_kernel
'''
i=s.index('.amdgcn_target')
s=s[:i]+'; @launch kernel=k3_kernel grid=(1,1,1) block=(64,1,1) lds=0\n'+s[i:]
k3=f'''.globl k3_kernel
.p2align 8
.type k3_kernel,@function
k3_kernel:
 s_cmp_ge_u32 s2, 1
 s_cbranch_scc1 k3_end
 s_memrealtime s[6:7]
 s_load_dwordx2 s[4:5], s[0:1], 88
 s_waitcnt lgkmcnt(0)
{red(A,14,'a')}
{red(B,15,'b')}
 s_sub_u32 s8, s15, s14
 s_mul_i32 s8, s8, {M}
 s_add_u32 s8, s8, 50000
 s_min_u32 s8, s8, 200000
k3_loop:
 s_memrealtime s[10:11]
 s_waitcnt lgkmcnt(0)
 s_sub_u32 s9, s10, s6
 s_cmp_lt_u32 s9, s8
 s_cbranch_scc1 k3_loop
k3_end:
 s_endpgm
'''
i=s.index('.section .rodata')
s=s[:i]+k3+s[i:]+'''.p2align 6
.amdhsa_kernel k3_kernel
  .amdhsa_next_free_vgpr 8
  .amdhsa_next_free_sgpr 102
  .amdhsa_accum_offset 8
  .amdhsa_group_segment_fixed_size 0
  .amdhsa_kernarg_size 96
  .amdhsa_user_sgpr_count 2
  .amdhsa_user_sgpr_kernarg_segment_ptr 1
  .amdhsa_system_sgpr_workgroup_id_x 1
.end_amdhsa_kernel
'''
open(out,'w').write(s)
```

```python
import sys
src,out,A,B,M=sys.argv[1:6]
M=int(M)
def red(x,sd,tag):
    if x=='now': return f's_mov_b32 s{sd}, s6'
    if x.startswith('ke'):
        return f''' v_mov_b32 v1, {0x8f0000}
 global_load_dword v3, v1, s[4:5]
 s_waitcnt vmcnt(0)
 v_readfirstlane_b32 s{sd}, v3'''
    p=x.split(','); op=p[0]; k,f=int(p[1]),int(p[2])
    wl,wh=0,15
    if len(p)>3 and p[3][0]=='w':
        wl,wh=map(int,p[3][1:].split('-')); p=p[:3]
    if len(p)>3: first,step,n=int(p[3]),8,31
    else: first,step,n=0,1,250
    return f''' v_and_b32 v1, 15, v0
 v_min_u32 v1, {wh-wl}, v1
 v_add_u32 v1, {wl}, v1
 v_lshlrev_b32 v1, 6, v1
 v_add_u32 v1, {0x800000+(k*256+first)*1024+f*4}, v1
 v_lshrrev_b32 v4, 4, v0
 v_mul_u32_u24 v4, {step*1024}, v4
 v_add_u32 v1, v1, v4
 v_mov_b32 v2, {0 if op=='max' else -1}
 s_mov_b32 s12, 0
k3_r{tag}:
 global_load_dword v3, v1, s[4:5]
 v_add_u32 v1, {step*1024}, v1
 s_waitcnt vmcnt(0)
 v_{op}_u32 v2, v2, v3
 s_add_u32 s12, s12, 1
 s_cmp_lt_u32 s12, {n-3}
 s_cbranch_scc1 k3_r{tag}
 s_mov_b32 s12, 0
 s_mov_b32 s{sd}, {0 if op=='max' else -1}
k3_l{tag}:
 v_readlane_b32 s13, v2, s12
 s_{op}_u32 s{sd}, s{sd}, s13
 s_add_u32 s12, s12, 1
 s_cmp_lt_u32 s12, 64
 s_cbranch_scc1 k3_l{tag}'''
s=open(src).read()
import re
if len(sys.argv)>6:
    ls=re.findall(r'; @launch kernel=.*\n',s)
    m={'1':ls[0],'2':ls[1],'e':'; @launch kernel=ke_kernel grid=(1,1,1) block=(64,1,1) lds=0\n',
       'E':'; @launch kernel=ke_kernel grid=(250,1,1) block=(1024,1,1) lds=137216\n',
       'F':'; @launch kernel=ke_kernel grid=(250,1,1) block=(1024,1,1) lds=0\n',
       'G':'; @launch kernel=ke_kernel grid=(1,1,1) block=(64,1,1) lds=137216\n'}
    s=s.replace(ls[0]+ls[1],''.join(m[c] for c in sys.argv[6]))
    if re.search('[eEFG]',sys.argv[6]):
        i=s.index('.section .rodata')
        s=s[:i]+'''.globl ke_kernel
.p2align 8
.type ke_kernel,@function
ke_kernel:
 s_memrealtime s[6:7]
 s_cmp_ge_u32 s2, 1
 s_cbranch_scc1 ke_end
 s_load_dwordx2 s[4:5], s[0:1], 88
 v_mov_b32 v1, 0x8f0000
 s_waitcnt lgkmcnt(0)
 v_mov_b32 v2, s6
 global_store_dword v1, v2, s[4:5]
ke_end:
 s_endpgm
'''+s[i:]+'''.p2align 6
.amdhsa_kernel ke_kernel
  .amdhsa_next_free_vgpr 8
  .amdhsa_next_free_sgpr 102
  .amdhsa_accum_offset 8
  .amdhsa_group_segment_fixed_size 0
  .amdhsa_kernarg_size 96
  .amdhsa_user_sgpr_count 2
  .amdhsa_user_sgpr_kernarg_segment_ptr 1
  .amdhsa_system_sgpr_workgroup_id_x 1
.end_amdhsa_kernel
'''
i=s.index('.amdgcn_target')
s=s[:i]+'; @launch kernel=k3_kernel grid=(1,1,1) block=(64,1,1) lds=0\n'+s[i:]
k3=f'''.globl k3_kernel
.p2align 8
.type k3_kernel,@function
k3_kernel:
 s_cmp_ge_u32 s2, 1
 s_cbranch_scc1 k3_end
 s_memrealtime s[6:7]
 s_load_dwordx2 s[4:5], s[0:1], 88
 s_waitcnt lgkmcnt(0)
{red(A,14,'a')}
{red(B,15,'b')}
 s_sub_u32 s8, s15, s14
 s_mul_i32 s8, s8, {M}
 s_add_u32 s8, s8, 50000
 s_min_u32 s8, s8, 200000
k3_loop:
 s_memrealtime s[10:11]
 s_waitcnt lgkmcnt(0)
 s_sub_u32 s9, s10, s6
 s_cmp_lt_u32 s9, s8
 s_cbranch_scc1 k3_loop
k3_end:
 s_endpgm
'''
i=s.index('.section .rodata')
s=s[:i]+k3+s[i:]+'''.p2align 6
.amdhsa_kernel k3_kernel
  .amdhsa_next_free_vgpr 8
  .amdhsa_next_free_sgpr 102
  .amdhsa_accum_offset 8
  .amdhsa_group_segment_fixed_size 0
  .amdhsa_kernarg_size 96
  .amdhsa_user_sgpr_count 2
  .amdhsa_user_sgpr_kernarg_segment_ptr 1
  .amdhsa_system_sgpr_workgroup_id_x 1
.end_amdhsa_kernel
'''
open(out,'w').write(s)
```

```python
import sys
src,out,A,B,M=sys.argv[1:6]
mode=M[0]; M=int(M[1:])
def red(x,sd,tag):
    if x=='zero': return f's_mov_b32 s{sd}, 0'
    if x=='now': return f's_mov_b32 s{sd}, s6'
    if x.startswith('ke'):
        return f''' v_mov_b32 v1, {0x8f0000}
 global_load_dword v3, v1, s[4:5]
 s_waitcnt vmcnt(0)
 v_readfirstlane_b32 s{sd}, v3'''
    p=x.split(','); op=p[0]; k,f=int(p[1]),int(p[2])
    wl,wh=0,15
    if len(p)>3 and p[3][0]=='w':
        wl,wh=map(int,p[3][1:].split('-')); p=p[:3]
    if len(p)>3: first,step,n=int(p[3]),8,31
    else: first,step,n=0,1,250
    return f''' v_and_b32 v1, 15, v0
 v_min_u32 v1, {wh-wl}, v1
 v_add_u32 v1, {wl}, v1
 v_lshlrev_b32 v1, 6, v1
 v_add_u32 v1, {0x800000+(k*256+first)*1024+f*4}, v1
 v_lshrrev_b32 v4, 4, v0
 v_mul_u32_u24 v4, {step*1024}, v4
 v_add_u32 v1, v1, v4
 v_mov_b32 v2, {0 if op=='max' else -1}
 s_mov_b32 s12, 0
k3_r{tag}:
 global_load_dword v3, v1, s[4:5]
 v_add_u32 v1, {step*1024}, v1
 s_waitcnt vmcnt(0)
 v_{op}_u32 v2, v2, v3
 s_add_u32 s12, s12, 1
 s_cmp_lt_u32 s12, {n-3}
 s_cbranch_scc1 k3_r{tag}
 s_mov_b32 s12, 0
 s_mov_b32 s{sd}, {0 if op=='max' else -1}
k3_l{tag}:
 v_readlane_b32 s13, v2, s12
 s_{op}_u32 s{sd}, s{sd}, s13
 s_add_u32 s12, s12, 1
 s_cmp_lt_u32 s12, 64
 s_cbranch_scc1 k3_l{tag}'''
s=open(src).read()
import re
if len(sys.argv)>6:
    ls=re.findall(r'; @launch kernel=.*\n',s)
    m={'1':ls[0],'2':ls[1],'e':'; @launch kernel=ke_kernel grid=(1,1,1) block=(64,1,1) lds=0\n',
       'E':'; @launch kernel=ke_kernel grid=(250,1,1) block=(1024,1,1) lds=137216\n',
       'F':'; @launch kernel=ke_kernel grid=(250,1,1) block=(1024,1,1) lds=0\n',
       'G':'; @launch kernel=ke_kernel grid=(1,1,1) block=(64,1,1) lds=137216\n'}
    s=s.replace(ls[0]+ls[1],''.join(m[c] for c in sys.argv[6]))
    if re.search('[eEFG]',sys.argv[6]):
        i=s.index('.section .rodata')
        s=s[:i]+'''.globl ke_kernel
.p2align 8
.type ke_kernel,@function
ke_kernel:
 s_memrealtime s[6:7]
 s_cmp_ge_u32 s2, 1
 s_cbranch_scc1 ke_end
 s_load_dwordx2 s[4:5], s[0:1], 88
 v_mov_b32 v1, 0x8f0000
 s_waitcnt lgkmcnt(0)
 v_mov_b32 v2, s6
 global_store_dword v1, v2, s[4:5]
ke_end:
 s_endpgm
'''+s[i:]+'''.p2align 6
.amdhsa_kernel ke_kernel
  .amdhsa_next_free_vgpr 8
  .amdhsa_next_free_sgpr 102
  .amdhsa_accum_offset 8
  .amdhsa_group_segment_fixed_size 0
  .amdhsa_kernarg_size 96
  .amdhsa_user_sgpr_count 2
  .amdhsa_user_sgpr_kernarg_segment_ptr 1
  .amdhsa_system_sgpr_workgroup_id_x 1
.end_amdhsa_kernel
'''
i=s.index('.amdgcn_target')
s=s[:i]+'; @launch kernel=k3_kernel grid=(1,1,1) block=(64,1,1) lds=0\n'+s[i:]
k3=f'''.globl k3_kernel
.p2align 8
.type k3_kernel,@function
k3_kernel:
 s_cmp_ge_u32 s2, 1
 s_cbranch_scc1 k3_end
 s_memrealtime s[6:7]
 s_load_dwordx2 s[4:5], s[0:1], 88
 v_mov_b32 v1, 0x4000000
 s_waitcnt lgkmcnt(0)
 global_load_dword v3, v1, s[4:5]
 s_waitcnt vmcnt(0)
 v_readfirstlane_b32 s8, v3
 v_mov_b32 v3, 0x13572468
 global_store_dword v1, v3, s[4:5]
 s_cmp_eq_u32 s8, 0x13572468
 s_cbranch_scc{1 if mode=='F' else 0} k3_end
{red(A,14,'a')}
{red(B,15,'b')}
 s_sub_u32 s8, s15, s14
 s_mul_i32 s8, s8, {M}
 s_add_u32 s8, s8, 50000
 s_min_u32 s8, s8, 200000
k3_loop:
 s_memrealtime s[10:11]
 s_waitcnt lgkmcnt(0)
 s_sub_u32 s9, s10, s6
 s_cmp_lt_u32 s9, s8
 s_cbranch_scc1 k3_loop
k3_end:
 s_endpgm
'''
i=s.index('.section .rodata')
s=s[:i]+k3+s[i:]+'''.p2align 6
.amdhsa_kernel k3_kernel
  .amdhsa_next_free_vgpr 8
  .amdhsa_next_free_sgpr 102
  .amdhsa_accum_offset 8
  .amdhsa_group_segment_fixed_size 0
  .amdhsa_kernarg_size 96
  .amdhsa_user_sgpr_count 2
  .amdhsa_user_sgpr_kernarg_segment_ptr 1
  .amdhsa_system_sgpr_workgroup_id_x 1
.end_amdhsa_kernel
'''
open(out,'w').write(s)
```

```python
import sys
src,out,B=sys.argv[1:4]; M=int(sys.argv[4]) if len(sys.argv)>4 else 100
def red(x,sd,tag,sub):
    if x=='now': return f' s_sub_u32 s{sd}, s6, s14\n s_mul_i32 s{sd}, s{sd}, {M}'
    op,k,w=x.split(','); k=int(k); wl,wh=map(int,w.split('-')); n=wh-wl+1
    o={'avg':'add'}.get(op,op)
    msk=n-1 if n&(n-1)==0 else 15
    return f''' v_and_b32 v1, {msk}, v0
 v_min_u32 v1, {wh-wl}, v1
 v_add_u32 v1, {wl}, v1
 v_lshlrev_b32 v1, 7, v1
 v_add_u32 v1, {0x800000+k*4}, v1
 v_lshrrev_b32 v4, 4, v0
 v_lshlrev_b32 v4, 11, v4
 v_add_u32 v1, v1, v4
 v_mov_b32 v2, {-1 if op=='min' else 0}
 s_mov_b32 s12, 0
k3_r{tag}:
 global_load_dword v3, v1, s[4:5]
 v_add_u32 v1, 8192, v1
 s_waitcnt vmcnt(0)
 v_subrev_u32 v3, {sub}, v3
 v_{o}_u32 v2, v2, v3
 s_add_u32 s12, s12, 1
 s_cmp_lt_u32 s12, 64
 s_cbranch_scc1 k3_r{tag}
 s_mov_b32 s12, 0
 s_mov_b32 s{sd}, {-1 if op=='min' else 0}
k3_l{tag}:
 v_readlane_b32 s13, v2, s12
 s_{o}_u32 s{sd}, s{sd}, s13
 s_add_u32 s12, s12, 1
 s_cmp_lt_u32 s12, 64
 s_cbranch_scc1 k3_l{tag}
 s_mul_i32 s{sd}, s{sd}, {M if sub!='0' else 1}
 {f's_lshr_b32 s{sd}, s{sd}, 12' if op=='avg' else ''}'''
s=open(src).read()
i=s.index('.amdgcn_target')
s=s[:i]+'; @launch kernel=k3_kernel grid=(1,1,1) block=(64,1,1) lds=0\n'+s[i:]
k3=f'''.globl k3_kernel
.p2align 8
.type k3_kernel,@function
k3_kernel:
 s_cmp_ge_u32 s2, 1
 s_cbranch_scc1 k3_end
 s_memrealtime s[6:7]
 s_load_dwordx2 s[4:5], s[0:1], 88
 v_mov_b32 v1, 0x4000000
 s_waitcnt lgkmcnt(0)
 global_load_dword v3, v1, s[4:5]
 s_waitcnt vmcnt(0)
 v_readfirstlane_b32 s8, v3
 v_mov_b32 v3, 0x13572468
 global_store_dword v1, v3, s[4:5]
 s_cmp_eq_u32 s8, 0x13572468
 s_cbranch_scc1 k3_end
{red('min,13,0-15',14,'a','0')}
{red(B,15,'b','s14')}
 s_add_u32 s8, s15, 50000
 s_min_u32 s8, s8, 300000
k3_loop:
 s_memrealtime s[10:11]
 s_waitcnt lgkmcnt(0)
 s_sub_u32 s9, s10, s6
 s_cmp_lt_u32 s9, s8
 s_cbranch_scc1 k3_loop
k3_end:
 s_endpgm
'''
i=s.index('.section .rodata')
s=s[:i]+k3+s[i:]+'''.p2align 6
.amdhsa_kernel k3_kernel
  .amdhsa_next_free_vgpr 8
  .amdhsa_next_free_sgpr 102
  .amdhsa_accum_offset 8
  .amdhsa_group_segment_fixed_size 0
  .amdhsa_kernarg_size 96
  .amdhsa_user_sgpr_count 2
  .amdhsa_user_sgpr_kernarg_segment_ptr 1
  .amdhsa_system_sgpr_workgroup_id_x 1
.end_amdhsa_kernel
'''
open(out,'w').write(s)
```

```python
import sys
src,out,B=sys.argv[1:4]; M=int(sys.argv[4]) if len(sys.argv)>4 else 100
mode=sys.argv[5] if len(sys.argv)>5 else 'F'
base=int(sys.argv[6]) if len(sys.argv)>6 else 50000
def red(x,sd,tag,sub):
    if x=='now': return f' s_sub_u32 s{sd}, s6, s14\n s_mul_i32 s{sd}, s{sd}, {M}'
    op,k,w=x.split(','); k=int(k); wl,wh=map(int,w.split('-')); n=wh-wl+1
    o={'avg':'add'}.get(op,op)
    msk=n-1 if n&(n-1)==0 else 15
    return f''' v_and_b32 v1, {msk}, v0
 v_min_u32 v1, {wh-wl}, v1
 v_add_u32 v1, {wl}, v1
 v_lshlrev_b32 v1, 7, v1
 v_add_u32 v1, {0x800000+k*4}, v1
 v_lshrrev_b32 v4, 4, v0
 v_lshlrev_b32 v4, 11, v4
 v_add_u32 v1, v1, v4
 v_mov_b32 v2, {-1 if op=='min' else 0}
 s_mov_b32 s12, 0
k3_r{tag}:
 global_load_dword v3, v1, s[4:5]
 v_add_u32 v1, 8192, v1
 s_waitcnt vmcnt(0)
 v_subrev_u32 v3, {sub}, v3
 v_{o}_u32 v2, v2, v3
 s_add_u32 s12, s12, 1
 s_cmp_lt_u32 s12, 64
 s_cbranch_scc1 k3_r{tag}
 s_mov_b32 s12, 0
 s_mov_b32 s{sd}, {-1 if op=='min' else 0}
k3_l{tag}:
 v_readlane_b32 s13, v2, s12
 s_{o}_u32 s{sd}, s{sd}, s13
 s_add_u32 s12, s12, 1
 s_cmp_lt_u32 s12, 64
 s_cbranch_scc1 k3_l{tag}
 s_mul_i32 s{sd}, s{sd}, {M if sub!='0' else 1}
 {f's_lshr_b32 s{sd}, s{sd}, 12' if op=='avg' else ''}'''
s=open(src).read()
i=s.index('.amdgcn_target')
s=s[:i]+'; @launch kernel=k3_kernel grid=(1,1,1) block=(64,1,1) lds=0\n'+s[i:]
k3=f'''.globl k3_kernel
.p2align 8
.type k3_kernel,@function
k3_kernel:
 s_cmp_ge_u32 s2, 1
 s_cbranch_scc1 k3_end
 s_memrealtime s[6:7]
 s_load_dwordx2 s[4:5], s[0:1], 88
 v_mov_b32 v1, 0x4000000
 s_waitcnt lgkmcnt(0)
 global_load_dword v3, v1, s[4:5]
 s_waitcnt vmcnt(0)
 v_readfirstlane_b32 s8, v3
 v_mov_b32 v3, 0x13572468
 global_store_dword v1, v3, s[4:5]
 s_cmp_eq_u32 s8, 0x13572468
 { {'F':'s_cbranch_scc1 k3_end','R':'s_cbranch_scc0 k3_end','A':''}[mode] }
{red('min,13,0-15',14,'a','0')}
{red(B,15,'b','s14')}
 s_add_u32 s8, s15, {base}
 s_min_u32 s8, s8, 300000
k3_loop:
 s_memrealtime s[10:11]
 s_waitcnt lgkmcnt(0)
 s_sub_u32 s9, s10, s6
 s_cmp_lt_u32 s9, s8
 s_cbranch_scc1 k3_loop
k3_end:
 s_endpgm
'''
i=s.index('.section .rodata')
s=s[:i]+k3+s[i:]+'''.p2align 6
.amdhsa_kernel k3_kernel
  .amdhsa_next_free_vgpr 8
  .amdhsa_next_free_sgpr 102
  .amdhsa_accum_offset 8
  .amdhsa_group_segment_fixed_size 0
  .amdhsa_kernarg_size 96
  .amdhsa_user_sgpr_count 2
  .amdhsa_user_sgpr_kernarg_segment_ptr 1
  .amdhsa_system_sgpr_workgroup_id_x 1
.end_amdhsa_kernel
'''
open(out,'w').write(s)
```
